```python
import torch

def _softmax(x, axis=-1):
    return torch.softmax(x, dim=axis)
def _gelu(x):
    return torch.nn.functional.gelu(x, approximate="tanh")
def _silu(x):
    return torch.nn.functional.silu(x)
def _sigmoid(x):
    return torch.sigmoid(x)
def _layernorm(x, axis=-1, eps=1e-5):
    m = x.mean(dim=axis, keepdim=True)
    v = x.var(dim=axis, keepdim=True, unbiased=False)
    return (x - m) / torch.sqrt(v + eps)
def _scatter_add(tgt, idx, src, axis=0):
    return tgt.clone().index_add_(axis, idx, src)
def _segment_sum(src, seg, n):
    out = torch.zeros((n,) + src.shape[1:], dtype=src.dtype)
    return out.index_add_(0, seg, src)
def _pad(x, pw):
    flat = tuple(v for pair in reversed(pw) for v in pair)
    return torch.nn.functional.pad(x, flat)

kernel_name = 'concat_heads__mha_block__softmax_full_mha__prompt'

def setup_inputs():

    _w = (lambda a: (lambda t: t.to(torch.bfloat16) if t.is_floating_point() else t)(torch.as_tensor(a)))
    def _A_setup():
        B, S, D, H = 1, 2048, 448, 16
        return {
            "x": _w((lambda *s: torch.randn(*s, dtype=torch.bfloat16) * 0.2)(B, S, D)),
            "wqkv": _w((lambda *s: torch.randn(*s, dtype=torch.bfloat16) * 0.2)(D, 3 * D)),
            "wo": _w((lambda *s: torch.randn(*s, dtype=torch.bfloat16) * 0.05)(D, D)),
        }
    _A_in = _A_setup()

    def _B_setup():
        B, S, D = 1, 2048, 448
        return {
            "x": _w((lambda *s: torch.randn(*s, dtype=torch.bfloat16) * 0.2)(B, S, D)),
            "wqkv": _w((lambda *s: torch.randn(*s, dtype=torch.bfloat16) * 0.2)(D, 3 * D)),
            "wo": _w((lambda *s: torch.randn(*s, dtype=torch.bfloat16) * 0.05)(D, D)),
        }
    _B_in = _B_setup()

    return {
        "A_x": _A_in["x"],
        "A_wqkv": _A_in["wqkv"],
        "A_wo": _A_in["wo"],
        "B_x": _B_in["x"],
        "B_wqkv": _B_in["wqkv"],
        "B_wo": _B_in["wo"],
    }

def reference(A_x, A_wqkv, A_wo, B_x, B_wqkv, B_wo):
    def _A_ref(x, wqkv, wo):
        B, S, D = x.shape
        H = 16
        Dh = D // H
        qkv = (lambda x, *d: x.permute(*d))((x @ wqkv).reshape(B, S, 3, H, Dh), 2, 0, 3, 1, 4)
        q, k, v = qkv[0], qkv[1], qkv[2]
        scores = torch.einsum("bhqd,bhkd->bhqk", q, k) * (Dh ** -0.5)
        p = _softmax(scores, axis=-1)
        o = torch.einsum("bhqk,bhkd->bhqd", p, v)
        return (lambda x, *d: x.permute(*d))(o, 0, 2, 1, 3).reshape(B, S, D) @ wo

    def _B_ref(x, wqkv, wo):
        B, S, D = x.shape
        H = 16; Dh = D // H
        qkv = (lambda x, *d: x.permute(*d))((x @ wqkv).reshape(B, S, 3, H, Dh), 2, 0, 3, 1, 4)
        q, k, v = qkv[0], qkv[1], qkv[2]
        scale = Dh ** -0.5
        scores = torch.einsum("bhqd,bhkd->bhqk", q, k) * scale
        p = _softmax(scores, axis=-1)
        o = torch.einsum("bhqk,bhkd->bhqd", p, v)
        return (lambda x, *d: x.permute(*d))(o, 0, 2, 1, 3).reshape(B, S, D) @ wo

    a = _A_ref(A_x, A_wqkv, A_wo)
    b = _B_ref(B_x, B_wqkv, B_wo)
    return torch.concatenate([a, b], axis=-1)
```

```python
import math,struct
L=[]
A=L.append
def f2u(x): return struct.unpack('<I',struct.pack('<f',x))[0]
QOFF,KOFF,VOFF,OOFF=0,4<<20,8<<20,12<<20
for u in range(2048): assert (u*2341)>>16==u//28
def hdr(name):
    A(f".globl {name}\n.p2align 8\n.type {name},@function\n{name}:")
def srd(d,b,n):
    A(f"s_mov_b32 s{d}, s{b}\ns_and_b32 s{d+1}, s{b+1}, 0xffff\ns_mov_b32 s{d+2}, {n}\ns_mov_b32 s{d+3}, 0x00020000")

def gemm(name,mode):
    qkv = mode=='qkv'
    NCB = 7 if qkv else 2
    NT=NCB*32; NW = 1344 if qkv else 448
    NWG = 192 if qkv else 224
    perblk=NWG//2
    U=NT//8
    NI=U
    IPW=NI//4
    CH=64*NT*2
    hdr(name)
    A(f"s_cmp_ge_u32 s2, {NWG}\ns_cbranch_scc1 {name}_end")
    A(f"s_cmp_ge_u32 s2, {perblk}\ns_cselect_b32 s20, 1, 0\ns_mul_i32 s23, s20, {perblk}\ns_sub_u32 s23, s2, s23\ns_and_b32 s21, s23, 15\ns_lshr_b32 s22, s23, 4")
    A("s_mul_i32 s24, s20, 24")
    A("s_load_dwordx2 s[28:29], s[0:1], 64")
    A("s_load_dwordx2 s[30:31], s[0:1], 48")
    if qkv:
        A("s_load_dwordx2 s[26:27], s[0:1], s24")
        A("s_add_u32 s25, s24, 8\ns_load_dwordx2 s[32:33], s[0:1], s25")
    else:
        A("s_add_u32 s25, s24, 16\ns_load_dwordx2 s[32:33], s[0:1], s25")
    A("v_and_b32 v1, 63, v0\nv_lshrrev_b32 v2, 6, v0\ns_nop 0\nv_readfirstlane_b32 s34, v2")
    A("v_and_b32 v3, 31, v1\nv_lshrrev_b32 v4, 5, v1")
    A("s_waitcnt lgkmcnt(0)")
    if qkv: srd(4,26,2048*896)
    else:
        A(f"s_mul_i32 s25, s20, {2048*896}\ns_add_u32 s25, s25, {OOFF}\ns_add_u32 s26, s28, s25\ns_addc_u32 s27, s29, 0")
        srd(4,26,2048*896)
    srd(8,32,448*NW*2)
    srd(12,28,16<<20)
    srd(16,30,2048*896*2)
    A("s_lshl_b32 s35, s21, 2\ns_add_u32 s35, s35, s34")
    A("s_lshl_b32 s36, s35, 5\nv_add_u32 v5, s36, v3\nv_mul_u32_u24 v5, 896, v5\nv_lshl_add_u32 v5, v4, 4, v5")
    A(f"s_mul_i32 s37, s22, {NT*2}")
    A("s_lshl_b32 s38, s34, 6")
    for i in range(IPW):
        A(f"s_mul_i32 s39, s34, {IPW*64}\ns_add_u32 s39, s39, {i*64}\nv_add_u32 v6, s39, v1")
        if U==28: A("v_mul_u32_u24 v7, 2341, v6\nv_lshrrev_b32 v7, 16, v7")
        else: A("v_lshrrev_b32 v7, 3, v6")
        A(f"v_mul_u32_u24 v8, {U}, v7\nv_sub_u32 v8, v6, v8\nv_mul_u32_u24 v7, {NW*2}, v7\nv_lshl_add_u32 v7, v8, 4, v7\nv_add_u32 v{128+i}, s37, v7")
    def dma(buf,chunk_sreg):
        for i in range(IPW):
            A(f"s_mul_i32 s39, s34, {IPW*1024}\ns_add_u32 s39, s39, {buf*CH+i*1024}\ns_mov_b32 m0, s39\ns_nop 0")
            A(f"buffer_load_dwordx4 v{128+i}, s[8:11], {chunk_sreg} offen lds")
    A("s_mov_b32 s40, 0")
    dma(0,"s40")
    for ks in range(28):
        A(f"buffer_load_dwordx4 v[{16+4*ks}:{19+4*ks}], v5, s[4:7], 0 offen offset:{ks*32}")
    A(f"v_and_b32 v6, 15, v1\nv_lshrrev_b32 v7, 2, v6\nv_lshl_add_u32 v7, v4, 3, v7\nv_mul_u32_u24 v9, {NT*2}, v7\nv_and_b32 v6, 3, v1\nv_lshl_add_u32 v9, v6, 3, v9\nv_bfe_u32 v6, v1, 4, 1\nv_lshl_add_u32 v9, v6, 5, v9")
    for i in range(NCB*16): A(f"v_accvgpr_write_b32 a{i}, 0")
    if qkv: A("s_cmp_ge_u32 s22, 4\ns_cselect_b32 s41, 1, 0")
    for c in range(7):
        buf=c&1
        A("s_waitcnt vmcnt(0)\ns_barrier")
        if c<6:
            A(f"s_mov_b32 s40, {(c+1)*64*NW*2}")
            dma(buf^1,"s40")
        def rd(ks):
            for cb in range(NCB):
                o=buf*CH+ks*16*NT*2+cb*64
                r=136+(ks&1)*28+cb*4
                A(f"ds_read_b64_tr_b16 v[{r}:{r+1}], v9 offset:{o}\nds_read_b64_tr_b16 v[{r+2}:{r+3}], v9 offset:{o+4*NT*2}")
        def mm(ks,sw):
            for cb in range(NCB):
                r=136+(ks&1)*28+cb*4; x=16+4*(c*4+ks)
                if sw: A(f"v_mfma_f32_32x32x16_bf16 a[{cb*16}:{cb*16+15}], v[{x}:{x+3}], v[{r}:{r+3}], a[{cb*16}:{cb*16+15}]")
                else: A(f"v_mfma_f32_32x32x16_bf16 a[{cb*16}:{cb*16+15}], v[{r}:{r+3}], v[{x}:{x+3}], a[{cb*16}:{cb*16+15}]")
        def body(sw):
            rd(0)
            for ks in range(4):
                if ks<3:
                    rd(ks+1); A(f"s_waitcnt lgkmcnt({NCB*2})")
                else: A("s_waitcnt lgkmcnt(0)")
                mm(ks,sw)
        if qkv:
            A(f"s_cmp_eq_u32 s41, 1\ns_cbranch_scc1 {name}_v{c}")
            body(False); A(f"s_branch {name}_j{c}\n{name}_v{c}:"); body(True); A(f"{name}_j{c}:")
        else: body(False)
    A("s_nop 15\ns_nop 7")
    for i in range(NCB*16): A(f"v_accvgpr_read_b32 v{16+i}, a{i}")
    if qkv:
        A("s_and_b32 s42, s22, 1\ns_lshl_b32 s42, s42, 3\ns_lshl_b32 s43, s20, 4\ns_add_u32 s42, s42, s43\ns_lshl_b32 s42, s42, 6\ns_add_u32 s42, s42, s35\ns_lshl_b32 s42, s42, 11")
        A(f"s_cmp_eq_u32 s41, 1\ns_cbranch_scc1 {name}_ev")
        A(f"s_cmp_ge_u32 s22, 2\ns_cselect_b32 s43, {KOFF}, {QOFF}\ns_cselect_b32 s44, 1.0, {f2u(28**-0.5*math.log2(math.e))}\ns_add_u32 s42, s42, s43")
        A("v_lshlrev_b32 v5, 4, v3")
        def qo(f):
            hd,d=divmod(f,28); return hd*131072+(d//16)*1024+((d%16)//8)*512+(d%8)*2
        for cb in range(7):
            for a in range(4):
                f=cb*32+a*8; c0=qo(f); c1=qo(f+4); r=16+cb*16+a*4
                for k in range(4): A(f"v_mul_f32 v{r+k}, s44, v{r+k}")
                A(f"v_cvt_pk_bf16_f32 v{r}, v{r}, v{r+1}\nv_cvt_pk_bf16_f32 v{r+1}, v{r+2}, v{r+3}")
                A(f"s_mov_b32 s45, {(c1-c0)&0xffffffff}\ns_add_u32 s46, s42, {c0}\nv_mad_i32_i24 v6, v4, s45, v5")
                A(f"buffer_store_dwordx2 v[{r}:{r+1}], v6, s[12:15], s46 offen")
        A("v_mov_b32 v10, 0\nv_mov_b32 v11, 0\nv_lshlrev_b32 v6, 17, v4\nv_add_u32 v6, v6, v5")
        for i in range(4): A(f"s_add_u32 s46, s42, {i*2*131072+1024+512+8}\nbuffer_store_dwordx2 v[10:11], v6, s[12:15], s46 offen")
        A(f"s_branch {name}_end\n{name}_ev:")
        A(f"s_add_u32 s42, s42, {VOFF}")
        for cb in range(7):
            A(f"v_add_u32 v5, {cb*32}, v3\nv_mul_u32_u24 v6, 2341, v5\nv_lshrrev_b32 v6, 16, v6\nv_mul_u32_u24 v7, 28, v6\nv_sub_u32 v7, v5, v7\nv_lshlrev_b32 v6, 17, v6\nv_lshl_add_u32 v6, v7, 4, v6\nv_lshl_add_u32 v6, v4, 9, v6")
            for ks in range(2):
                r=16+cb*16+ks*8
                for k in range(4): A(f"v_cvt_pk_bf16_f32 v{r+k}, v{r+2*k}, v{r+2*k+1}")
                A(f"buffer_store_dwordx4 v[{r}:{r+3}], v6, s[12:15], s42 offen offset:{ks*1024}")
        A("v_and_b32 v5, 3, v1\nv_cmp_eq_u32 vcc, 0, v5\nv_mov_b32 v7, 0x3f803f80\ns_nop 1\nv_cndmask_b32 v8, 0, v7, vcc\nv_mov_b32 v9, v8\nv_mov_b32 v10, v8\nv_mov_b32 v11, v8")
        A("v_lshrrev_b32 v6, 4, v1\nv_lshlrev_b32 v6, 17, v6\nv_bfe_u32 v7, v1, 3, 1\nv_lshl_add_u32 v6, v7, 10, v6\nv_bfe_u32 v7, v1, 2, 1\nv_lshl_add_u32 v6, v7, 9, v6\nv_add_u32 v5, 28, v5\nv_lshl_add_u32 v6, v5, 4, v6")
        for i in range(2): A(f"s_add_u32 s46, s42, {i*4*131072}\nbuffer_store_dwordx4 v[8:11], v6, s[16-4:16-1], s46 offen".replace("s[16-4:16-1]","s[12:15]"))
    else:
        A("s_lshl_b32 s36, s35, 5\nv_add_u32 v5, s36, v3\nv_mul_u32_u24 v5, 1792, v5\nv_lshl_add_u32 v5, v4, 3, v5\ns_mul_i32 s42, s20, 896\ns_lshl_b32 s43, s22, 7\ns_add_u32 s42, s42, s43")
        for cb in range(2):
            for a in range(4):
                r=16+cb*16+a*4
                A(f"v_cvt_pk_bf16_f32 v{r}, v{r}, v{r+1}\nv_cvt_pk_bf16_f32 v{r+1}, v{r+2}, v{r+3}")
                A(f"buffer_store_dwordx2 v[{r}:{r+1}], v5, s[16:19], s42 offen offset:{cb*64+a*16}")
    A(f"{name}_end:\ns_endpgm")

def attn(name):
    hdr(name)
    A(f"s_cmp_ge_u32 s2, 512\ns_cbranch_scc1 {name}_end")
    A("s_load_dwordx2 s[28:29], s[0:1], 64")
    A("s_and_b32 s20, s2, 31\ns_lshr_b32 s21, s2, 5")
    A("v_and_b32 v1, 63, v0\nv_lshrrev_b32 v2, 6, v0\ns_nop 0\nv_readfirstlane_b32 s34, v2\nv_lshlrev_b32 v2, 4, v1")
    A("s_waitcnt lgkmcnt(0)")
    srd(12,28,16<<20)
    A("s_lshl_b32 s22, s20, 17")
    A("s_lshl_b32 s23, s21, 2\ns_add_u32 s23, s23, s34\ns_lshl_b32 s24, s23, 11\ns_add_u32 s24, s24, s22")
    A("buffer_load_dwordx4 v[8:11], v2, s[12:15], s24 offen\nbuffer_load_dwordx4 v[12:15], v2, s[12:15], s24 offen offset:1024")
    A(f"s_cmp_ge_u32 s34, 2\ns_cselect_b32 s25, {VOFF-KOFF}, 0\ns_add_u32 s25, s25, {KOFF}\ns_add_u32 s25, s25, s22\ns_and_b32 s26, s34, 1\ns_lshl_b32 s26, s26, 12\ns_add_u32 s25, s25, s26\ns_lshl_b32 s27, s34, 12")
    def dma():
        for i in range(4):
            A(f"s_add_u32 s31, s30, s27\ns_add_u32 s31, s31, {i*1024}\ns_mov_b32 m0, s31\ns_add_u32 s32, s25, {i*1024}\nbuffer_load_dwordx4 v2, s[12:15], s32 offen lds")
        A("s_add_u32 s25, s25, 8192")
    A("s_mov_b32 s30, 0"); dma()
    for i in range(16): A(f"v_mov_b32 v{16+i}, 0\nv_mov_b32 v{32+i}, 0")
    A("s_mov_b32 s33, 0\ns_mov_b32 s36, 1")
    A(f"{name}_loop:")
    A("s_waitcnt vmcnt(0)\ns_barrier")
    A("v_add_u32 v3, s30, v2\ns_xor_b32 s30, s30, 16384")
    A(f"s_cmp_lt_u32 s33, 15\ns_cbranch_scc0 {name}_nod"); dma(); A(f"{name}_nod:")
    for t in range(4):
        A(f"ds_read_b128 v[64:67], v3 offset:{t*2048}\nds_read_b128 v[68:71], v3 offset:{t*2048+1024}\nds_read_b128 v[72:75], v3 offset:{8192+t*2048}\nds_read_b128 v[76:79], v3 offset:{8192+t*2048+1024}")
        A("s_waitcnt lgkmcnt(2)")
        A("v_mfma_f32_32x32x16_bf16 v[48:63], v[64:67], v[8:11], v[16:31]\nv_mfma_f32_32x32x16_bf16 v[48:63], v[68:71], v[12:15], v[48:63]\ns_nop 15")
        A("v_max3_f32 v4, v48, v49, v50")
        for k in range(51,63,2): A(f"v_max3_f32 v4, v4, v{k}, v{k+1}")
        A("v_max_f32 v4, v4, v63")
        A(f"v_cmp_lt_f32 vcc, 8.0, v4\ns_cmp_eq_u32 s36, 1\ns_cbranch_scc1 {name}_r{t}\ns_cbranch_vccz {name}_c{t}\n{name}_r{t}:")
        A("v_mov_b32 v5, v4\ns_nop 1\nv_permlane32_swap_b32 v5, v4\ns_nop 1\nv_max_f32 v4, v4, v5")
        A(f"s_cmp_eq_u32 s36, 1\ns_cbranch_scc1 {name}_f{t}\nv_max_f32 v4, 0, v4\nv_sub_f32 v5, 0, v4\nv_exp_f32 v5, v5\ns_nop 0")
        for k in range(16): A(f"v_mul_f32 v{32+k}, v{32+k}, v5")
        A(f"{name}_f{t}:\ns_mov_b32 s36, 0")
        for k in range(16): A(f"v_sub_f32 v{16+k}, v{16+k}, v4\nv_sub_f32 v{48+k}, v{48+k}, v4")
        A(f"{name}_c{t}:")
        for k in range(16): A(f"v_exp_f32 v{48+k}, v{48+k}")
        A("s_nop 0")
        for k in range(8): A(f"v_cvt_pk_bf16_f32 v{48+k}, v{48+2*k}, v{49+2*k}")
        A("s_waitcnt lgkmcnt(0)\ns_nop 1")
        A("v_mfma_f32_32x32x16_bf16 v[32:47], v[72:75], v[48:51], v[32:47]\nv_mfma_f32_32x32x16_bf16 v[32:47], v[76:79], v[52:55], v[32:47]")
    A(f"s_add_u32 s33, s33, 1\ns_cmp_lt_u32 s33, 16\ns_cbranch_scc1 {name}_loop")
    A("s_nop 15\nv_mov_b32 v4, v44\nv_mov_b32 v5, v44\ns_nop 1\nv_permlane32_swap_b32 v5, v4\ns_nop 1\nv_rcp_f32 v4, v4\ns_nop 0")
    for k in range(16): A(f"v_mul_f32 v{32+k}, v{32+k}, v4")
    for k in range(8): A(f"v_cvt_pk_bf16_f32 v{32+k}, v{32+2*k}, v{33+2*k}")
    A(f"s_lshr_b32 s37, s20, 4\ns_mul_i32 s37, s37, {2048*896}\ns_and_b32 s38, s20, 15\ns_mul_i32 s38, s38, 56\ns_add_u32 s37, s37, s38\ns_mul_i32 s38, s23, {32*896}\ns_add_u32 s37, s37, s38\ns_add_u32 s37, s37, {OOFF}")
    A("v_and_b32 v5, 31, v1\nv_mul_u32_u24 v5, 896, v5\nv_lshrrev_b32 v6, 5, v1\nv_lshl_add_u32 v5, v6, 3, v5")
    for a in range(3): A(f"buffer_store_dwordx2 v[{32+2*a}:{33+2*a}], v5, s[12:15], s37 offen offset:{a*16}")
    A("v_cmp_gt_u32 vcc, 32, v1\ns_and_saveexec_b64 s[40:41], vcc\nbuffer_store_dwordx2 v[38:39], v5, s[12:15], s37 offen offset:48")
    A(f"{name}_end:\ns_endpgm")

def kd(name,nv,acc):
    A(f".amdhsa_kernel {name}\n.amdhsa_next_free_vgpr {nv}\n.amdhsa_next_free_sgpr 64\n.amdhsa_accum_offset {acc}\n.amdhsa_group_segment_fixed_size 0\n.amdhsa_kernarg_size 72\n.amdhsa_user_sgpr_count 2\n.amdhsa_user_sgpr_kernarg_segment_ptr 1\n.amdhsa_system_sgpr_workgroup_id_x 1\n.end_amdhsa_kernel")
A("; @launch kernel=qkv_kernel grid=(192,1,1) block=(256,1,1) lds=57344")
A("; @launch kernel=attn_kernel grid=(512,1,1) block=(256,1,1) lds=32768")
A("; @launch kernel=oproj_kernel grid=(224,1,1) block=(256,1,1) lds=16384")
A('.amdgcn_target "amdgcn-amd-amdhsa--gfx950"\n.text')
gemm("qkv_kernel","qkv"); attn("attn_kernel"); gemm("oproj_kernel","o")
A('.section .rodata,"a"')
for n,nv,ac in (("qkv_kernel",304,192),("attn_kernel",80,80),("oproj_kernel",224,192)):
    A(".p2align 6"); kd(n,nv,ac)
open("concat_heads__mha_block__softmax_full_mha__prompt.s","w").write("\n".join(L)+"\n")
```

```python
import math,struct
L=[]
A=L.append
def f2u(x): return struct.unpack('<I',struct.pack('<f',x))[0]
QOFF,KOFF,VOFF,OOFF=0,4<<20,8<<20,12<<20
for u in range(2048): assert (u*2341)>>16==u//28
def hdr(name):
    A(f".globl {name}\n.p2align 8\n.type {name},@function\n{name}:")
def srd(d,b,n):
    A(f"s_mov_b32 s{d}, s{b}\ns_and_b32 s{d+1}, s{b+1}, 0xffff\ns_mov_b32 s{d+2}, {n}\ns_mov_b32 s{d+3}, 0x00020000")

def gemm(name,mode):
    qkv = mode=='qkv'
    NCB = 7 if qkv else 2
    NT=NCB*32; NW = 1344 if qkv else 448
    NWG = 192 if qkv else 224
    perblk=NWG//2
    U=NT//8
    NI=U
    IPW=NI//4
    CH=64*NT*2
    hdr(name)
    A(f"s_cmp_ge_u32 s2, {NWG}\ns_cbranch_scc1 {name}_end")
    A(f"s_cmp_ge_u32 s2, {perblk}\ns_cselect_b32 s20, 1, 0\ns_mul_i32 s23, s20, {perblk}\ns_sub_u32 s23, s2, s23\ns_and_b32 s21, s23, 15\ns_lshr_b32 s22, s23, 4")
    A("s_mul_i32 s24, s20, 24")
    A("s_load_dwordx2 s[28:29], s[0:1], 64")
    A("s_load_dwordx2 s[30:31], s[0:1], 48")
    if qkv:
        A("s_load_dwordx2 s[26:27], s[0:1], s24")
        A("s_add_u32 s25, s24, 8\ns_load_dwordx2 s[32:33], s[0:1], s25")
    else:
        A("s_add_u32 s25, s24, 16\ns_load_dwordx2 s[32:33], s[0:1], s25")
    A("v_and_b32 v1, 63, v0\nv_lshrrev_b32 v2, 6, v0\ns_nop 0\nv_readfirstlane_b32 s34, v2")
    A("v_and_b32 v3, 31, v1\nv_lshrrev_b32 v4, 5, v1")
    A("s_waitcnt lgkmcnt(0)")
    if qkv: srd(4,26,2048*896)
    else:
        A(f"s_mul_i32 s25, s20, {2048*896}\ns_add_u32 s25, s25, {OOFF}\ns_add_u32 s26, s28, s25\ns_addc_u32 s27, s29, 0")
        srd(4,26,2048*896)
    srd(8,32,448*NW*2)
    srd(12,28,16<<20)
    srd(16,30,2048*896*2)
    A("s_lshl_b32 s35, s21, 2\ns_add_u32 s35, s35, s34")
    A("s_lshl_b32 s36, s35, 5\nv_add_u32 v5, s36, v3\nv_mul_u32_u24 v5, 896, v5\nv_lshl_add_u32 v5, v4, 4, v5")
    A(f"s_mul_i32 s37, s22, {NT*2}")
    A("s_lshl_b32 s38, s34, 6")
    for i in range(IPW):
        A(f"s_mul_i32 s39, s34, {IPW*64}\ns_add_u32 s39, s39, {i*64}\nv_add_u32 v6, s39, v1")
        if U==28: A("v_mul_u32_u24 v7, 2341, v6\nv_lshrrev_b32 v7, 16, v7")
        else: A("v_lshrrev_b32 v7, 3, v6")
        A(f"v_mul_u32_u24 v8, {U}, v7\nv_sub_u32 v8, v6, v8\nv_mul_u32_u24 v7, {NW*2}, v7\nv_lshl_add_u32 v7, v8, 4, v7\nv_add_u32 v{128+i}, s37, v7")
    def dma(buf,chunk_sreg):
        for i in range(IPW):
            A(f"s_mul_i32 s39, s34, {IPW*1024}\ns_add_u32 s39, s39, {buf*CH+i*1024}\ns_mov_b32 m0, s39\ns_nop 0")
            A(f"buffer_load_dwordx4 v{128+i}, s[8:11], {chunk_sreg} offen lds")
    A("s_mov_b32 s40, 0")
    dma(0,"s40")
    for ks in range(28):
        A(f"buffer_load_dwordx4 v[{16+4*ks}:{19+4*ks}], v5, s[4:7], 0 offen offset:{ks*32}")
    A(f"v_and_b32 v6, 15, v1\nv_lshrrev_b32 v7, 2, v6\nv_lshl_add_u32 v7, v4, 3, v7\nv_mul_u32_u24 v9, {NT*2}, v7\nv_and_b32 v6, 3, v1\nv_lshl_add_u32 v9, v6, 3, v9\nv_bfe_u32 v6, v1, 4, 1\nv_lshl_add_u32 v9, v6, 5, v9")
    for i in range(NCB*16): A(f"v_accvgpr_write_b32 a{i}, 0")
    if qkv: A("s_cmp_ge_u32 s22, 4\ns_cselect_b32 s41, 1, 0")
    for c in range(7):
        buf=c&1
        A("s_waitcnt vmcnt(0)\ns_barrier")
        if c<6:
            A(f"s_mov_b32 s40, {(c+1)*64*NW*2}")
            dma(buf^1,"s40")
        def rd(ks):
            for cb in range(NCB):
                o=buf*CH+ks*16*NT*2+cb*64
                r=136+(ks&1)*28+cb*4
                A(f"ds_read_b64_tr_b16 v[{r}:{r+1}], v9 offset:{o}\nds_read_b64_tr_b16 v[{r+2}:{r+3}], v9 offset:{o+4*NT*2}")
        def mm(ks,sw):
            for cb in range(NCB):
                r=136+(ks&1)*28+cb*4; x=16+4*(c*4+ks)
                if sw: A(f"v_mfma_f32_32x32x16_bf16 a[{cb*16}:{cb*16+15}], v[{x}:{x+3}], v[{r}:{r+3}], a[{cb*16}:{cb*16+15}]")
                else: A(f"v_mfma_f32_32x32x16_bf16 a[{cb*16}:{cb*16+15}], v[{r}:{r+3}], v[{x}:{x+3}], a[{cb*16}:{cb*16+15}]")
        def body(sw):
            rd(0)
            for ks in range(4):
                if ks<3:
                    rd(ks+1); A(f"s_waitcnt lgkmcnt({NCB*2})")
                else: A("s_waitcnt lgkmcnt(0)")
                mm(ks,sw)
        if qkv:
            A(f"s_cmp_eq_u32 s41, 1\ns_cbranch_scc1 {name}_v{c}")
            body(False); A(f"s_branch {name}_j{c}\n{name}_v{c}:"); body(True); A(f"{name}_j{c}:")
        else: body(False)
    A("s_nop 15\ns_nop 7")
    for i in range(NCB*16): A(f"v_accvgpr_read_b32 v{16+i}, a{i}")
    if qkv:
        A("s_and_b32 s42, s22, 1\ns_lshl_b32 s42, s42, 3\ns_lshl_b32 s43, s20, 4\ns_add_u32 s42, s42, s43\ns_lshl_b32 s42, s42, 6\ns_add_u32 s42, s42, s35\ns_lshl_b32 s42, s42, 11")
        A(f"s_cmp_eq_u32 s41, 1\ns_cbranch_scc1 {name}_ev")
        A(f"s_cmp_ge_u32 s22, 2\ns_cselect_b32 s43, {KOFF}, {QOFF}\ns_cselect_b32 s44, 1.0, {f2u(28**-0.5*math.log2(math.e))}\ns_add_u32 s42, s42, s43")
        A("v_lshlrev_b32 v5, 4, v3")
        def qo(f):
            hd,d=divmod(f,28); return hd*131072+(d//16)*1024+((d%16)//8)*512+(d%8)*2
        for cb in range(7):
            for a in range(4):
                f=cb*32+a*8; c0=qo(f); c1=qo(f+4); r=16+cb*16+a*4
                for k in range(4): A(f"v_mul_f32 v{r+k}, s44, v{r+k}")
                A(f"v_cvt_pk_bf16_f32 v{r}, v{r}, v{r+1}\nv_cvt_pk_bf16_f32 v{r+1}, v{r+2}, v{r+3}")
                A(f"s_mov_b32 s45, {(c1-c0)&0xffffffff}\ns_add_u32 s46, s42, {c0}\nv_mad_i32_i24 v6, v4, s45, v5")
                A(f"buffer_store_dwordx2 v[{r}:{r+1}], v6, s[12:15], s46 offen")
        A("v_mov_b32 v10, 0\nv_mov_b32 v11, 0\nv_lshlrev_b32 v6, 17, v4\nv_add_u32 v6, v6, v5")
        for i in range(4): A(f"s_add_u32 s46, s42, {i*2*131072+1024+512+8}\nbuffer_store_dwordx2 v[10:11], v6, s[12:15], s46 offen")
        A(f"s_branch {name}_end\n{name}_ev:")
        A(f"s_add_u32 s42, s42, {VOFF}")
        for cb in range(7):
            A(f"v_add_u32 v5, {cb*32}, v3\nv_mul_u32_u24 v6, 2341, v5\nv_lshrrev_b32 v6, 16, v6\nv_mul_u32_u24 v7, 28, v6\nv_sub_u32 v7, v5, v7\nv_lshlrev_b32 v6, 17, v6\nv_lshl_add_u32 v6, v7, 4, v6\nv_lshl_add_u32 v6, v4, 9, v6")
            for ks in range(2):
                r=16+cb*16+ks*8
                for k in range(4): A(f"v_cvt_pk_bf16_f32 v{r+k}, v{r+2*k}, v{r+2*k+1}")
                A(f"buffer_store_dwordx4 v[{r}:{r+3}], v6, s[12:15], s42 offen offset:{ks*1024}")
        A("v_and_b32 v5, 3, v1\nv_cmp_eq_u32 vcc, 0, v5\nv_mov_b32 v7, 0x3f803f80\ns_nop 1\nv_cndmask_b32 v8, 0, v7, vcc\nv_mov_b32 v9, v8\nv_mov_b32 v10, v8\nv_mov_b32 v11, v8")
        A("v_lshrrev_b32 v6, 4, v1\nv_lshlrev_b32 v6, 17, v6\nv_bfe_u32 v7, v1, 3, 1\nv_lshl_add_u32 v6, v7, 10, v6\nv_bfe_u32 v7, v1, 2, 1\nv_lshl_add_u32 v6, v7, 9, v6\nv_add_u32 v5, 28, v5\nv_lshl_add_u32 v6, v5, 4, v6")
        for i in range(2): A(f"s_add_u32 s46, s42, {i*4*131072}\nbuffer_store_dwordx4 v[8:11], v6, s[16-4:16-1], s46 offen".replace("s[16-4:16-1]","s[12:15]"))
    else:
        A("s_lshl_b32 s36, s35, 5\nv_add_u32 v5, s36, v3\nv_mul_u32_u24 v5, 1792, v5\nv_lshl_add_u32 v5, v4, 3, v5\ns_mul_i32 s42, s20, 896\ns_lshl_b32 s43, s22, 7\ns_add_u32 s42, s42, s43")
        for cb in range(2):
            for a in range(4):
                r=16+cb*16+a*4
                A(f"v_cvt_pk_bf16_f32 v{r}, v{r}, v{r+1}\nv_cvt_pk_bf16_f32 v{r+1}, v{r+2}, v{r+3}")
                A(f"buffer_store_dwordx2 v[{r}:{r+1}], v5, s[16:19], s42 offen offset:{cb*64+a*16}")
    A(f"{name}_end:\ns_endpgm")

def attn(name):
    hdr(name)
    A(f"s_cmp_ge_u32 s2, 512\ns_cbranch_scc1 {name}_end")
    A("s_load_dwordx2 s[28:29], s[0:1], 64")
    A("s_and_b32 s20, s2, 31\ns_lshr_b32 s21, s2, 5")
    A("v_and_b32 v1, 63, v0\nv_lshrrev_b32 v2, 6, v0\ns_nop 0\nv_readfirstlane_b32 s34, v2\nv_lshlrev_b32 v2, 4, v1")
    A("s_waitcnt lgkmcnt(0)")
    srd(12,28,16<<20)
    A("s_lshl_b32 s22, s20, 17")
    A("s_lshl_b32 s23, s21, 2\ns_add_u32 s23, s23, s34\ns_lshl_b32 s24, s23, 11\ns_add_u32 s24, s24, s22")
    A("buffer_load_dwordx4 v[8:11], v2, s[12:15], s24 offen\nbuffer_load_dwordx4 v[12:15], v2, s[12:15], s24 offen offset:1024")
    A(f"s_cmp_ge_u32 s34, 2\ns_cselect_b32 s25, {VOFF-KOFF}, 0\ns_add_u32 s25, s25, {KOFF}\ns_add_u32 s25, s25, s22\ns_and_b32 s26, s34, 1\ns_lshl_b32 s26, s26, 12\ns_add_u32 s25, s25, s26\ns_lshl_b32 s27, s34, 12")
    def dma():
        for i in range(4):
            A(f"s_add_u32 s31, s30, s27\ns_add_u32 s31, s31, {i*1024}\ns_mov_b32 m0, s31\ns_add_u32 s32, s25, {i*1024}\nbuffer_load_dwordx4 v2, s[12:15], s32 offen lds")
        A("s_add_u32 s25, s25, 8192")
    A("s_mov_b32 s30, 0"); dma()
    for i in range(16): A(f"v_mov_b32 v{16+i}, 0\nv_mov_b32 v{32+i}, 0")
    A("s_mov_b32 s33, 0\ns_mov_b32 s36, 1")
    A(f"{name}_loop:")
    A("s_waitcnt vmcnt(0)\ns_barrier")
    A("v_add_u32 v3, s30, v2\ns_xor_b32 s30, s30, 16384")
    A(f"s_cmp_lt_u32 s33, 15\ns_cbranch_scc0 {name}_nod"); dma(); A(f"{name}_nod:")
    def rdS(t):
        k=64+(t&1)*32; S=48+(t&1)*32
        A(f"ds_read_b128 v[{k}:{k+3}], v3 offset:{t*2048}\nds_read_b128 v[{k+4}:{k+7}], v3 offset:{t*2048+1024}\nds_read_b128 v[{k+8}:{k+11}], v3 offset:{8192+t*2048}\nds_read_b128 v[{k+12}:{k+15}], v3 offset:{8192+t*2048+1024}")
        A("s_waitcnt lgkmcnt(2)")
        A(f"v_mfma_f32_32x32x16_bf16 v[{S}:{S+15}], v[{k}:{k+3}], v[8:11], v[16:31]\nv_mfma_f32_32x32x16_bf16 v[{S}:{S+15}], v[{k+4}:{k+7}], v[12:15], v[{S}:{S+15}]")
    rdS(0)
    for t in range(4):
        k=64+(t&1)*32; S=48+(t&1)*32; S2=48+((t+1)&1)*32
        if t<3: rdS(t+1)
        else: A("s_nop 15")
        A(f"v_max3_f32 v4, v{S}, v{S+1}, v{S+2}")
        for j in range(S+3,S+15,2): A(f"v_max3_f32 v4, v4, v{j}, v{j+1}")
        A(f"v_max_f32 v4, v4, v{S+15}")
        A(f"v_cmp_lt_f32 vcc, 8.0, v4\ns_cmp_eq_u32 s36, 1\ns_cbranch_scc1 {name}_r{t}\ns_cbranch_vccz {name}_c{t}\n{name}_r{t}:")
        A("s_nop 15\nv_mov_b32 v5, v4\ns_nop 1\nv_permlane32_swap_b32 v5, v4\ns_nop 1\nv_max_f32 v4, v4, v5")
        A(f"s_cmp_eq_u32 s36, 1\ns_cbranch_scc1 {name}_f{t}\nv_max_f32 v4, 0, v4\nv_sub_f32 v5, 0, v4\nv_exp_f32 v5, v5\ns_nop 0")
        for j in range(16): A(f"v_mul_f32 v{32+j}, v{32+j}, v5")
        A(f"{name}_f{t}:\ns_mov_b32 s36, 0")
        for j in range(16):
            A(f"v_sub_f32 v{16+j}, v{16+j}, v4\nv_sub_f32 v{S+j}, v{S+j}, v4")
            if t<3: A(f"v_sub_f32 v{S2+j}, v{S2+j}, v4")
        A(f"{name}_c{t}:")
        for j in range(16): A(f"v_exp_f32 v{S+j}, v{S+j}")
        A("s_nop 0")
        for j in range(8): A(f"v_cvt_pk_bf16_f32 v{S+j}, v{S+2*j}, v{S+1+2*j}")
        A("s_nop 1")
        A(f"v_mfma_f32_32x32x16_bf16 v[32:47], v[{k+8}:{k+11}], v[{S}:{S+3}], v[32:47]\nv_mfma_f32_32x32x16_bf16 v[32:47], v[{k+12}:{k+15}], v[{S+4}:{S+7}], v[32:47]")
    A(f"s_add_u32 s33, s33, 1\ns_cmp_lt_u32 s33, 16\ns_cbranch_scc1 {name}_loop")
    A("s_nop 15\nv_mov_b32 v4, v44\nv_mov_b32 v5, v44\ns_nop 1\nv_permlane32_swap_b32 v5, v4\ns_nop 1\nv_rcp_f32 v4, v4\ns_nop 0")
    for k in range(16): A(f"v_mul_f32 v{32+k}, v{32+k}, v4")
    for k in range(8): A(f"v_cvt_pk_bf16_f32 v{32+k}, v{32+2*k}, v{33+2*k}")
    A(f"s_lshr_b32 s37, s20, 4\ns_mul_i32 s37, s37, {2048*896}\ns_and_b32 s38, s20, 15\ns_mul_i32 s38, s38, 56\ns_add_u32 s37, s37, s38\ns_mul_i32 s38, s23, {32*896}\ns_add_u32 s37, s37, s38\ns_add_u32 s37, s37, {OOFF}")
    A("v_and_b32 v5, 31, v1\nv_mul_u32_u24 v5, 896, v5\nv_lshrrev_b32 v6, 5, v1\nv_lshl_add_u32 v5, v6, 3, v5")
    for a in range(3): A(f"buffer_store_dwordx2 v[{32+2*a}:{33+2*a}], v5, s[12:15], s37 offen offset:{a*16}")
    A("v_cmp_gt_u32 vcc, 32, v1\ns_and_saveexec_b64 s[40:41], vcc\nbuffer_store_dwordx2 v[38:39], v5, s[12:15], s37 offen offset:48")
    A(f"{name}_end:\ns_endpgm")

def kd(name,nv,acc):
    A(f".amdhsa_kernel {name}\n.amdhsa_next_free_vgpr {nv}\n.amdhsa_next_free_sgpr 64\n.amdhsa_accum_offset {acc}\n.amdhsa_group_segment_fixed_size 0\n.amdhsa_kernarg_size 72\n.amdhsa_user_sgpr_count 2\n.amdhsa_user_sgpr_kernarg_segment_ptr 1\n.amdhsa_system_sgpr_workgroup_id_x 1\n.end_amdhsa_kernel")
A("; @launch kernel=qkv_kernel grid=(192,1,1) block=(256,1,1) lds=57344")
A("; @launch kernel=attn_kernel grid=(512,1,1) block=(256,1,1) lds=32768")
A("; @launch kernel=oproj_kernel grid=(224,1,1) block=(256,1,1) lds=16384")
A('.amdgcn_target "amdgcn-amd-amdhsa--gfx950"\n.text')
gemm("qkv_kernel","qkv"); attn("attn_kernel"); gemm("oproj_kernel","o")
A('.section .rodata,"a"')
for n,nv,ac in (("qkv_kernel",304,192),("attn_kernel",112,112),("oproj_kernel",224,192)):
    A(".p2align 6"); kd(n,nv,ac)
open("concat_heads__mha_block__softmax_full_mha__prompt.s","w").write("\n".join(L)+"\n")
```
